```python
import torch

def _softmax(x, axis=-1):
    return torch.softmax(x, dim=axis)
def _gelu(x):
    return torch.nn.functional.gelu(x, approximate="tanh")
def _silu(x):
    return torch.nn.functional.silu(x)
def _sigmoid(x):
    return torch.sigmoid(x)
def _layernorm(x, axis=-1, eps=1e-5):
    m = x.mean(dim=axis, keepdim=True)
    v = x.var(dim=axis, keepdim=True, unbiased=False)
    return (x - m) / torch.sqrt(v + eps)
def _scatter_add(tgt, idx, src, axis=0):
    return tgt.clone().index_add_(axis, idx, src)
def _segment_sum(src, seg, n):
    out = torch.zeros((n,) + src.shape[1:], dtype=src.dtype)
    return out.index_add_(0, seg, src)
def _pad(x, pw):
    flat = tuple(v for pair in reversed(pw) for v in pair)
    return torch.nn.functional.pad(x, flat)

kernel_name = 'standalone__consistency_rf_step__diffusion'

def setup_inputs():

    _w = (lambda a: (lambda t: t.to(torch.bfloat16) if t.is_floating_point() else t)(torch.as_tensor(a)))
    B, C, HW = 2, 320, 128
    return {
        "x": _w((lambda *s: torch.randn(*s, dtype=torch.bfloat16) * 0.05)(B, C, HW, HW)),
        "v": _w((lambda *s: torch.randn(*s, dtype=torch.bfloat16) * 0.05)(B, C, HW, HW)),
        "sigma": _w(torch.rand(B).to(float)),
    }

def reference(x, v, sigma):
    s = sigma.reshape(-1, 1, 1, 1)
    return x - s * v
```

```python
import argparse, sys

NAME = "standalone__consistency_rf_step__diffusion"
NBYTES = 2 * 320 * 128 * 128 * 2
HALF = NBYTES // 2

HEADER = """; Kernarg layout for this problem (48 bytes, ptrs only, base s[0:1]):
"""

def compute_chunk(X, V, T, sig, mask):
    L = []
    for d in range(4):
        t = T + 2 * d
        L.append(f"v_lshlrev_b32 v{t}, 16, v{V+d}")
        L.append(f"v_and_b32 v{t+1}, {mask}, v{V+d}")
    for d in range(4):
        t = T + 2 * d
        L.append(f"v_pk_mul_f32 v[{t}:{t+1}], v[{t}:{t+1}], {sig}")
    for d in range(4):
        t = T + 2 * d
        L.append(f"v_cvt_pk_bf16_f32 v{V+d}, v{t}, v{t+1}")
    for d in range(4):
        t = T + 2 * d
        L.append(f"v_lshlrev_b32 v{t}, 16, v{X+d}")
        L.append(f"v_and_b32 v{t+1}, {mask}, v{X+d}")
    for d in range(4):
        t = T + 2 * d
        p = T + 8 + 2 * (d & 1)
        L.append(f"v_lshlrev_b32 v{p}, 16, v{V+d}")
        L.append(f"v_and_b32 v{p+1}, {mask}, v{V+d}")
        L.append(f"v_pk_add_f32 v[{t}:{t+1}], v[{t}:{t+1}], v[{p}:{p+1}] neg_lo:[0,1] neg_hi:[0,1]")
    for d in range(4):
        t = T + 2 * d
        L.append(f"v_cvt_pk_bf16_f32 v{X+d}, v{t}, v{t+1}")
    return L


def gen_oneshot(block, U, layout, lflags, sflags, xcd_swz=False, name=NAME):
    wg_bytes = block * 16 * U
    assert HALF % wg_bytes == 0
    nwg = NBYTES // wg_bytes
    nwaves = block // 64
    L = []
    A = L.append
    A(f"; @launch grid=({nwg},1,1) block=({block},1,1) lds=0")
    A('.amdgcn_target "amdgcn-amd-amdhsa--gfx950"')
    A(".text")
    A(f".globl {name}_kernel")
    A(".p2align 8")
    A(f".type {name}_kernel,@function")
    A(f"{name}_kernel:")
    A("s_load_dwordx2 s[4:5], s[0:1], 0")
    A("s_load_dwordx2 s[8:9], s[0:1], 8")
    A("s_load_dwordx2 s[16:17], s[0:1], 16")
    A("s_load_dwordx2 s[12:13], s[0:1], 24")
    A(f"s_cmp_ge_u32 s2, {nwg}")
    A("s_cbranch_scc1 L_end")
    if xcd_swz:
        assert nwg % 8 == 0
        A("s_and_b32 s3, s2, 7")
        A("s_lshr_b32 s2, s2, 3")
        A(f"s_mul_i32 s3, s3, {nwg // 8}")
        A("s_add_u32 s2, s2, s3")
    A(f"s_mov_b32 s6, {NBYTES}")
    A("s_mov_b32 s7, 0x00020000")
    A(f"s_mov_b32 s10, {NBYTES}")
    A("s_mov_b32 s11, 0x00020000")
    A(f"s_mov_b32 s14, {NBYTES}")
    A("s_mov_b32 s15, 0x00020000")
    A(f"s_mul_i32 s3, s2, {wg_bytes}")
    A("s_mov_b32 s20, 0xffff0000")
    if layout == "wg":
        A("v_lshlrev_b32 v1, 4, v0")
        stride = block * 16
    else:
        A("v_lshrrev_b32 v2, 6, v0")
        A("v_and_b32 v1, 63, v0")
        A("v_lshlrev_b32 v1, 4, v1")
        A(f"v_mul_u32_u24 v2, {U*1024}, v2")
        A("v_add_u32 v1, v1, v2")
        stride = 1024
    groups = sorted(set((u * stride) // 4096 for u in range(U)))
    sreg = {}
    nxt = 22
    for g in groups:
        if g == 0:
            sreg[g] = "s3"
        else:
            sreg[g] = f"s{nxt}"
            A(f"s_add_u32 s{nxt}, s3, {g*4096}")
            nxt += 1
    def addr(u):
        off = u * stride
        return sreg[off // 4096], off % 4096
    DB = 4
    A("s_waitcnt lgkmcnt(0)")
    A("s_load_dword s18, s[16:17], 0")
    for u in range(U):
        so, imm = addr(u)
        o = f" offset:{imm}" if imm else ""
        A(f"buffer_load_dwordx4 v[{DB+8*u}:{DB+8*u+3}], v1, s[4:7], {so} offen{o}{lflags}")
        A(f"buffer_load_dwordx4 v[{DB+8*u+4}:{DB+8*u+7}], v1, s[8:11], {so} offen{o}{lflags}")
    T = DB + 8 * U
    A(f"s_cmp_ge_u32 s2, {nwg//2}")
    A("s_waitcnt lgkmcnt(0)")
    A("s_lshl_b32 s19, s18, 16")
    A("s_and_b32 s18, s18, s20")
    A(f"s_cmp_ge_u32 s2, {nwg//2}")
    A("s_cselect_b32 s18, s18, s19")
    A("s_mov_b32 s19, s18")
    for u in range(U):
        A(f"s_waitcnt vmcnt({2*U-2-u})")
        L.extend(compute_chunk(DB + 8 * u, DB + 8 * u + 4, T, "s[18:19]", "s20"))
        so, imm = addr(u)
        o = f" offset:{imm}" if imm else ""
        A(f"buffer_store_dwordx4 v[{DB+8*u}:{DB+8*u+3}], v1, s[12:15], {so} offen{o}{sflags}")
    A("L_end:")
    A("s_endpgm")
    nv = T + 12
    acc = (nv + 3) // 4 * 4
    A('.section .rodata,"a"')
    A(".p2align 6")
    A(f".amdhsa_kernel {name}_kernel")
    A(f"  .amdhsa_next_free_vgpr {nv}")
    A(f"  .amdhsa_next_free_sgpr {nxt+1}")
    A(f"  .amdhsa_accum_offset {acc}")
    A("  .amdhsa_group_segment_fixed_size 0")
    A("  .amdhsa_kernarg_size 48")
    A("  .amdhsa_user_sgpr_count 2")
    A("  .amdhsa_user_sgpr_kernarg_segment_ptr 1")
    A("  .amdhsa_system_sgpr_workgroup_id_x 1")
    A("  .amdhsa_float_denorm_mode_32 3")
    A("  .amdhsa_float_denorm_mode_16_64 3")
    A(".end_amdhsa_kernel")
    body = []
    for l in L:
        if l.startswith((";", ".", " ")) or l.endswith(":"):
            body.append(l)
        else:
            body.append("    " + l)
    return HEADER + "\n".join(body) + "\n"


if __name__ == "__main__":
    ap = argparse.ArgumentParser()
    ap.add_argument("--block", type=int, default=256)
    ap.add_argument("--U", type=int, default=4)
    ap.add_argument("--layout", default="wg")
    ap.add_argument("--lflags", default="")
    ap.add_argument("--sflags", default="")
    ap.add_argument("--xcd", action="store_true")
    ap.add_argument("-o", default="-")
    a = ap.parse_args()
    lf = "".join(" " + f for f in a.lflags.split(",") if f)
    sf = "".join(" " + f for f in a.sflags.split(",") if f)
    s = gen_oneshot(a.block, a.U, a.layout, lf, sf, a.xcd)
    if a.o == "-":
        sys.stdout.write(s)
    else:
        open(a.o, "w").write(s)
```

```python
import sys, re
from gen import *

def kd(name, nv, ns):
    acc = (nv + 3) // 4 * 4
    return f""".p2align 6
.amdhsa_kernel {name}
  .amdhsa_next_free_vgpr {nv}
  .amdhsa_next_free_sgpr {ns}
  .amdhsa_accum_offset {acc}
  .amdhsa_group_segment_fixed_size 0
  .amdhsa_kernarg_size 48
  .amdhsa_user_sgpr_count 2
  .amdhsa_user_sgpr_kernarg_segment_ptr 1
  .amdhsa_system_sgpr_workgroup_id_x 1
  .amdhsa_float_denorm_mode_32 3
  .amdhsa_float_denorm_mode_16_64 3
.end_amdhsa_kernel
"""

def make(main_src, Q, A, nwaves_total, block):
    m = re.search(r"; @launch grid=\((\d+),1,1\) block=\((\d+),1,1\) lds=(\d+)", main_src)
    grid, blk, lds = int(m.group(1)), int(m.group(2)), int(m.group(3))
    body = main_src.split(f"{NAME}_kernel:\n")[1].split('.section .rodata')[0]
    nv = int(re.search(r"next_free_vgpr (\d+)", main_src).group(1))
    ns = int(re.search(r"next_free_sgpr (\d+)", main_src).group(1))
    pre = """    s_memrealtime s[40:41]
    s_load_dwordx2 s[42:43], s[0:1], 40
    s_mov_b32 s44, s2
    v_mov_b32 v3, v0
"""
    wpw = blk // 64
    post = f"""    s_waitcnt vmcnt(0)
    s_memrealtime s[46:47]
    v_lshrrev_b32 v3, 6, v3
    s_mul_i32 s45, s44, {wpw}
    v_add_u32 v3, s45, v3
    v_lshlrev_b32 v3, 3, v3
    v_add_u32 v3, 256, v3
    s_waitcnt lgkmcnt(0)
    v_mov_b32 v4, s40
    v_mov_b32 v5, s46
    s_mov_b64 exec, 1
    global_store_dwordx2 v3, v[4:5], s[42:43]
L_end:
"""
    body = pre + body.replace("L_end:\n", post)
    per_lane = nwaves_total // 64
    qexpr = {
        0: "s_mov_b32 s30, 0",
        1: "s_mov_b32 s30, s24",
        2: "s_mov_b32 s30, s20",
        3: "s_sub_u32 s30, s23, s20",
        4: "s_sub_u32 s30, s21, s20",
        5: "s_sub_u32 s30, s24, s23",
        6: "s_sub_u32 s30, s22, s20",
    }[Q]
    red = []
    for l in range(64):
        red.append(f"    v_readlane_b32 s26, v10, {l}\n    v_readlane_b32 s27, v11, {l}\n    v_readlane_b32 s28, v12, {l}\n    v_readlane_b32 s29, v13, {l}\n    s_nop 1\n    s_min_u32 s20, s20, s26\n    s_max_u32 s21, s21, s27\n    s_min_u32 s22, s22, s28\n    s_max_u32 s23, s23, s29")
    red = "\n".join(red)
    src = HEADER + f"""; @launch kernel=stamp0_kernel grid=(1,1,1) block=(64,1,1) lds=0
; @launch kernel=main_kernel grid=({grid},1,1) block=({blk},1,1) lds={lds}
; @launch kernel=final_kernel grid=(1,1,1) block=(64,1,1) lds=0
.amdgcn_target "amdgcn-amd-amdhsa--gfx950"
.text
.globl stamp0_kernel
.p2align 8
.type stamp0_kernel,@function
stamp0_kernel:
    s_memrealtime s[4:5]
    s_load_dwordx2 s[6:7], s[0:1], 40
    s_cmp_ge_u32 s2, 1
    s_cbranch_scc1 L_end0
    v_mov_b32 v1, 0
    s_waitcnt lgkmcnt(0)
    v_mov_b32 v2, s4
    s_mov_b64 exec, 1
    global_store_dword v1, v2, s[6:7]
L_end0:
    s_endpgm
.globl main_kernel
.p2align 8
.type main_kernel,@function
main_kernel:
{body}
.globl final_kernel
.p2align 8
.type final_kernel,@function
final_kernel:
    s_memrealtime s[4:5]
    s_load_dwordx2 s[6:7], s[0:1], 40
    s_cmp_ge_u32 s2, 1
    s_cbranch_scc1 L_end2
    v_mov_b32 v2, 0
    v_lshlrev_b32 v1, 3, v0
    v_add_u32 v1, 256, v1
    s_waitcnt lgkmcnt(0)
    global_load_dword v2, v2, s[6:7]
    v_mov_b32 v10, -1
    v_mov_b32 v11, 0
    v_mov_b32 v12, -1
    v_mov_b32 v13, 0
    s_mov_b32 s8, 0
    s_waitcnt vmcnt(0)
L_loop2:
    global_load_dwordx2 v[4:5], v1, s[6:7]
    v_add_u32 v1, 512, v1
    s_waitcnt vmcnt(0)
    v_sub_u32 v4, v4, v2
    v_sub_u32 v5, v5, v2
    v_min_u32 v10, v10, v4
    v_max_u32 v11, v11, v4
    v_min_u32 v12, v12, v5
    v_max_u32 v13, v13, v5
    s_add_u32 s8, s8, 1
    s_cmp_lt_u32 s8, {per_lane}
    s_cbranch_scc1 L_loop2
    s_mov_b32 s20, -1
    s_mov_b32 s21, 0
    s_mov_b32 s22, -1
    s_mov_b32 s23, 0
    v_readfirstlane_b32 s25, v2
    s_nop 3
    s_sub_u32 s24, s4, s25
{red}
    {qexpr}
    s_min_u32 s30, s30, 100000
    s_mul_i32 s30, s30, {A}
    s_memrealtime s[32:33]
    s_waitcnt lgkmcnt(0)
L_spin:
    s_memrealtime s[34:35]
    s_waitcnt lgkmcnt(0)
    s_sub_u32 s36, s34, s32
    s_cmp_lt_u32 s36, s30
    s_cbranch_scc1 L_spin
L_end2:
    s_endpgm
.section .rodata,"a"
""" + kd("stamp0_kernel", 8, 16) + kd("main_kernel", nv, 48) + kd("final_kernel", 16, 40)
    return src

if __name__ == "__main__":
    main_path, Q, A, out = sys.argv[1], int(sys.argv[2]), int(sys.argv[3]), sys.argv[4]
    ms = open(main_path).read()
    m = re.search(r"; @launch grid=\((\d+),1,1\) block=\((\d+),1,1\)", ms)
    grid, blk = int(m.group(1)), int(m.group(2))
    open(out, "w").write(make(ms, Q, A, grid * blk // 64, blk))
```

```python
import sys, re
from gen import *
from diag import kd

def make(main_src, bufs, S, flags=""):
    m = re.search(r"; @launch grid=\((\d+),1,1\) block=\((\d+),1,1\) lds=(\d+)", main_src)
    grid, blk, lds = int(m.group(1)), int(m.group(2)), int(m.group(3))
    body = main_src.split(f"{NAME}_kernel:\n")[1].split('.section .rodata')[0]
    nv = int(re.search(r"next_free_vgpr (\d+)", main_src).group(1))
    ns = int(re.search(r"next_free_sgpr (\d+)", main_src).group(1))
    ptr = {"x": "s[4:5]", "v": "s[6:7]", "o": "s[10:11]"}
    P = []
    for bi, b in enumerate(bufs):
        P.append(f"""
    s_mov_b32 s20, 0          ; page
    s_mov_b32 s21, 0          ; mask
    s_mov_b32 s28, 0          ; total
L_page{bi}:
    s_mov_b32 s22, 0          ; half
L_half{bi}:
    s_mov_b32 s23, 0          ; sample
    s_mov_b32 s24, 0          ; sum
L_samp{bi}:
    s_lshl_b32 s25, s20, 21
    s_lshl_b32 s26, s22, 13
    s_add_u32 s25, s25, s26
    s_mul_i32 s26, s23, 65792
    s_add_u32 s25, s25, s26
    s_add_u32 s25, s25, 65536
    v_mov_b32 v1, s25
    s_memtime s[30:31]
    s_waitcnt lgkmcnt(0)
    global_load_dword v2, v1, {ptr[b]}{flags}
    s_waitcnt vmcnt(0)
    s_memtime s[32:33]
    s_waitcnt lgkmcnt(0)
    s_sub_u32 s26, s32, s30
    s_cmp_eq_u32 s23, 0
    s_cselect_b32 s26, 0, s26
    s_add_u32 s24, s24, s26
    s_add_u32 s23, s23, 1
    s_cmp_lt_u32 s23, {S}
    s_cbranch_scc1 L_samp{bi}
    s_add_u32 s28, s28, s24
    s_cmp_eq_u32 s22, 0
    s_cselect_b32 s27, s24, s27
    s_add_u32 s22, s22, 1
    s_cmp_lt_u32 s22, 2
    s_cbranch_scc1 L_half{bi}
    s_cmp_gt_u32 s27, s24
    s_cselect_b32 s25, 1, 0
    s_and_b32 s26, s20, 1
    s_xor_b32 s25, s25, s26
    s_mul_i32 s21, s21, 10
    s_add_u32 s21, s21, s25
    s_add_u32 s20, s20, 1
    s_cmp_lt_u32 s20, 10
    s_cbranch_scc1 L_page{bi}
    v_mov_b32 v1, {bi*8}
    v_mov_b32 v2, s21
    v_mov_b32 v3, s28
    global_store_dwordx2 v1, v[2:3], s[12:13]
""")
    P = "".join(P)
    src = HEADER + f"""; @launch kernel=probe_kernel grid=(1,1,1) block=(64,1,1) lds=0
; @launch kernel=main_kernel grid=({grid},1,1) block=({blk},1,1) lds={lds}
.amdgcn_target "amdgcn-amd-amdhsa--gfx950"
.text
.globl probe_kernel
.p2align 8
.type probe_kernel,@function
probe_kernel:
    s_load_dwordx8 s[4:11], s[0:1], 0
    s_load_dwordx2 s[12:13], s[0:1], 32
    s_cmp_ge_u32 s2, 1
    s_cbranch_scc1 L_end0
    s_mov_b64 exec, 1
    s_mov_b32 s27, 0
    s_waitcnt lgkmcnt(0)
{P}
L_end0:
    s_endpgm
.globl main_kernel
.p2align 8
.type main_kernel,@function
main_kernel:
{body}
.section .rodata,"a"
""" + kd("probe_kernel", 8, 40) + kd("main_kernel", nv, ns)
    return src

if __name__ == "__main__":
    main_path, bufs, S, out = sys.argv[1], sys.argv[2], int(sys.argv[3]), sys.argv[4]
    bufs = "" if bufs == "-" else bufs
    open(out, "w").write(make(open(main_path).read(), bufs, S))
```

```python
import argparse, sys
from gen import HEADER, NAME, NBYTES, HALF

def compute_chunk(X, V, T, sigop, mask):
    src, mods = sigop
    L = []
    for d in range(4):
        t = T + 2 * d
        L.append(f"v_lshlrev_b32 v{t}, 16, v{V+d}")
        L.append(f"v_and_b32 v{t+1}, {mask}, v{V+d}")
    for d in range(4):
        t = T + 2 * d
        L.append(f"v_pk_mul_f32 v[{t}:{t+1}], v[{t}:{t+1}], {src}{mods}")
    for d in range(4):
        t = T + 2 * d
        L.append(f"v_cvt_pk_bf16_f32 v{V+d}, v{t}, v{t+1}")
    for d in range(4):
        t = T + 2 * d
        L.append(f"v_lshlrev_b32 v{t}, 16, v{X+d}")
        L.append(f"v_and_b32 v{t+1}, {mask}, v{X+d}")
    for d in range(4):
        t = T + 2 * d
        p = T + 8 + 2 * (d & 1)
        L.append(f"v_lshlrev_b32 v{p}, 16, v{V+d}")
        L.append(f"v_and_b32 v{p+1}, {mask}, v{V+d}")
        L.append(f"v_pk_add_f32 v[{t}:{t+1}], v[{t}:{t+1}], v[{p}:{p+1}] neg_lo:[0,1] neg_hi:[0,1]")
    for d in range(4):
        t = T + 2 * d
        L.append(f"v_cvt_pk_bf16_f32 v{X+d}, v{t}, v{t+1}")
    return L


def gen(block, U, D, layout, early, lflags, sflags, minvgpr=0, name=NAME, sdelay=0, nostore=False, noload=False, lds=0, K=0):
    cb = block * 16
    assert NBYTES % (cb * U) == 0
    nwg = NBYTES // (cb * U)
    D = min(D, U)
    NB = D + 1 + sdelay if early else D + sdelay
    NB = min(NB, U)
    L = []
    A = L.append
    A(f"; @launch grid=({nwg},1,1) block=({block},1,1) lds={lds}")
    A('.amdgcn_target "amdgcn-amd-amdhsa--gfx950"')
    A(".text")
    A(f".globl {name}_kernel")
    A(".p2align 8")
    A(f".type {name}_kernel,@function")
    A(f"{name}_kernel:")
    A("s_load_dwordx2 s[4:5], s[0:1], 0")
    A("s_load_dwordx2 s[8:9], s[0:1], 8")
    A("s_load_dwordx2 s[16:17], s[0:1], 16")
    A("s_load_dwordx2 s[12:13], s[0:1], 24")
    A(f"s_cmp_ge_u32 s2, {nwg}")
    A("s_cbranch_scc1 L_end")
    A(f"s_mov_b32 s6, {NBYTES}")
    A("s_mov_b32 s7, 0x00020000")
    A(f"s_mov_b32 s10, {NBYTES}")
    A("s_mov_b32 s11, 0x00020000")
    A(f"s_mov_b32 s14, {NBYTES}")
    A("s_mov_b32 s15, 0x00020000")
    A("s_mov_b32 s20, 0xffff0000")
    SO = 32
    so = {}
    nxt = SO + 1
    if layout == "iod":
        assert nwg % 8 == 0 and (nwg * cb) % 16384 == 0
        if cb <= 8192:
            A("v_lshlrev_b32 v1, 4, v0")
        else:
            A("v_lshlrev_b32 v1, 4, v0")
            A("v_and_b32 v2, 0x2000, v1")
            A("v_add_u32 v1, v1, v2")
        A("s_and_b32 s24, s2, 3")
        A("s_lshr_b32 s25, s2, 3")
        A("s_lshl_b32 s25, s25, 2")
        A("s_or_b32 s24, s24, s25")
        A(f"s_mul_i32 s24, s24, {cb}")
        A("s_and_b32 s25, s24, 0x1fff")
        A("s_andn2_b32 s24, s24, 0x1fff")
        A("s_lshl_b32 s24, s24, 1")
        A("s_or_b32 s24, s24, s25")
        A("s_lshl_b32 s25, s2, 11")
        if K:
            A("s_xor_b32 s25, s25, 0x2000")
        stride = cb * nwg
        for u in range(U):
            r = SO + u
            A(f"s_add_u32 s{r}, s24, {u*stride}")
            A(f"s_lshr_b32 s26, s{r}, 8")
            A("s_xor_b32 s26, s26, s25")
            A("s_and_b32 s26, s26, 0x2000")
            A(f"s_or_b32 s{r}, s{r}, s26")
            so[u] = (f"s{r}", 0)
        nxt = SO + U
    else:
        A("v_lshlrev_b32 v1, 4, v0")
        if layout == "blk":
            A(f"s_mul_i32 s{SO}, s2, {cb*U}")
            stride = cb
        else:
            A(f"s_mul_i32 s{SO}, s2, {cb}")
            stride = cb * nwg
        used = {0: SO}
        for u in range(U):
            off = u * stride
            g = off // 4096
            if g not in used:
                used[g] = nxt
                A(f"s_add_u32 s{nxt}, s{SO}, {g*4096}")
                nxt += 1
            so[u] = (f"s{used[g]}", off % 4096)
    DB = 4
    T = DB + 8 * NB
    ops = []
    def buf(u):
        return DB + 8 * (u % NB)
    def issue_load(u):
        if noload: return
        s, imm = so[u]
        o = f" offset:{imm}" if imm else ""
        b = buf(u)
        A(f"buffer_load_dwordx4 v[{b}:{b+3}], v1, s[4:7], {s} offen{o}{lflags}")
        ops.append(("L", u))
        A(f"buffer_load_dwordx4 v[{b+4}:{b+7}], v1, s[8:11], {s} offen{o}{lflags}")
        ops.append(("L", u))
    def issue_store(u):
        if nostore: return
        s, imm = so[u]
        o = f" offset:{imm}" if imm else ""
        b = buf(u)
        A(f"buffer_store_dwordx4 v[{b}:{b+3}], v1, s[12:15], {s} offen{o}{sflags}")
        ops.append(("S", u))
    def wait_for(kind, u):
        if noload: return
        idx = max(i for i, o in enumerate(ops) if o == (kind, u))
        n = len(ops) - 1 - idx
        assert n < 64
        A(f"s_waitcnt vmcnt({n})")
    A("s_waitcnt lgkmcnt(0)")
    A("s_load_dword s18, s[16:17], 0")
    for u in range(D):
        issue_load(u)
    nextl = D
    A("s_waitcnt lgkmcnt(0)")
    A("s_and_b32 s19, s18, s20")
    A("s_lshl_b32 s18, s18, 16")
    def sig(u):
        if layout == "blk":
            return ("s[22:23]", " op_sel_hi:[1,0]")
        lo, hi = u * stride, (u + 1) * stride
        if hi <= HALF:
            return ("s[18:19]", " op_sel_hi:[1,0]")
        if lo >= HALF:
            return ("s[18:19]", " op_sel:[0,1] op_sel_hi:[1,1]")
        return ("s[22:23]", " op_sel_hi:[1,0]")
    if layout == "blk":
        A(f"s_cmp_ge_u32 s2, {nwg//2}")
        A("s_cselect_b32 s22, s19, s18")
    elif U % 2:
        um = U // 2
        if layout == "iod":
            A(f"s_cmp_ge_u32 {so[um][0]}, {HALF}")
        else:
            A(f"s_cmp_ge_u32 s2, {nwg//2}")
        A("s_cselect_b32 s22, s19, s18")
    pend = []
    for u in range(U):
        wait_for("L", u)
        if early and nextl < U:
            issue_load(nextl); nextl += 1
        b = buf(u)
        L.extend(compute_chunk(b, b + 4, T, sig(u), "s20"))
        pend.append(u)
        if len(pend) > sdelay:
            issue_store(pend.pop(0))
        if not early and nextl < U:
            issue_load(nextl); nextl += 1
    for u in pend:
        issue_store(u)
    A("L_end:")
    A("s_endpgm")
    nv = max(T + 12, minvgpr)
    acc = (nv + 3) // 4 * 4
    A('.section .rodata,"a"')
    A(".p2align 6")
    A(f".amdhsa_kernel {name}_kernel")
    A(f"  .amdhsa_next_free_vgpr {nv}")
    A(f"  .amdhsa_next_free_sgpr {nxt+1}")
    A(f"  .amdhsa_accum_offset {min(acc,256)}")
    A("  .amdhsa_group_segment_fixed_size 0")
    A("  .amdhsa_kernarg_size 48")
    A("  .amdhsa_user_sgpr_count 2")
    A("  .amdhsa_user_sgpr_kernarg_segment_ptr 1")
    A("  .amdhsa_system_sgpr_workgroup_id_x 1")
    A("  .amdhsa_float_denorm_mode_32 3")
    A("  .amdhsa_float_denorm_mode_16_64 3")
    A(".end_amdhsa_kernel")
    body = []
    for l in L:
        if l.startswith((";", ".", " ")) or l.endswith(":"):
            body.append(l)
        else:
            body.append("    " + l)
    return HEADER + "\n".join(body) + "\n"


if __name__ == "__main__":
    ap = argparse.ArgumentParser()
    ap.add_argument("--block", type=int, default=256)
    ap.add_argument("--U", type=int, default=4)
    ap.add_argument("--D", type=int, default=2)
    ap.add_argument("--layout", default="blk")
    ap.add_argument("--late", action="store_true")
    ap.add_argument("--lflags", default="")
    ap.add_argument("--sflags", default="")
    ap.add_argument("--minvgpr", type=int, default=0)
    ap.add_argument("--sdelay", type=int, default=0)
    ap.add_argument("--nostore", action="store_true")
    ap.add_argument("--noload", action="store_true")
    ap.add_argument("--lds", type=int, default=0)
    ap.add_argument("--K", type=int, default=0)
    ap.add_argument("-o", default="-")
    a = ap.parse_args()
    lf = "".join(" " + f for f in a.lflags.split(",") if f)
    sf = "".join(" " + f for f in a.sflags.split(",") if f)
    s = gen(a.block, a.U, a.D, a.layout, not a.late, lf, sf, a.minvgpr, sdelay=a.sdelay, nostore=a.nostore, noload=a.noload, lds=a.lds, K=a.K)
    if a.o == "-":
        sys.stdout.write(s)
    else:
        open(a.o, "w").write(s)
```

```python
import argparse, sys
from gen import HEADER, NAME, NBYTES, HALF

def gen(a, name=NAME):
    block, U, NB = a.block, a.U, a.NB
    cb = block * 16
    nwg = NBYTES // (cb * U)
    stride = cb * nwg
    lf = "".join(" " + f for f in a.lflags.split(",") if f)
    sf = "".join(" " + f for f in a.sflags.split(",") if f)
    L = []
    A = L.append
    A(f"; @launch grid=({nwg},1,1) block=({block},1,1) lds=0")
    A('.amdgcn_target "amdgcn-amd-amdhsa--gfx950"')
    A(".text")
    A(f".globl {name}_kernel")
    A(".p2align 8")
    A(f".type {name}_kernel,@function")
    A(f"{name}_kernel:")
    A("s_load_dwordx2 s[4:5], s[0:1], 0")
    A("s_load_dwordx2 s[8:9], s[0:1], 8")
    A("s_load_dwordx2 s[16:17], s[0:1], 16")
    A("s_load_dwordx2 s[12:13], s[0:1], 24")
    A(f"s_cmp_ge_u32 s2, {nwg}")
    A("s_cbranch_scc1 L_end")
    A(f"s_mov_b32 s6, {NBYTES}")
    A("s_mov_b32 s7, 0x00020000")
    A("s_mov_b32 s10, s6")
    A("s_mov_b32 s11, s7")
    A("s_mov_b32 s14, s6")
    A("s_mov_b32 s15, s7")
    A("s_mov_b32 s20, 0xffff0000")
    A("v_lshlrev_b32 v1, 4, v0")
    sh = cb.bit_length() - 1
    assert 1 << sh == cb
    A(f"s_lshl_b32 s32, s2, {sh}")
    A(f"s_mov_b32 s21, {stride}")
    A("s_add_u32 s33, s32, s21")
    DB = 4
    T = DB + 8 * NB
    R = T + 16
    P = R + 4
    def load(b, s):
        A(f"buffer_load_dwordx4 v[{b}:{b+3}], v1, s[4:7], {s} offen{lf}")
        A(f"buffer_load_dwordx4 v[{b+4}:{b+7}], v1, s[8:11], {s} offen{lf}")
    A("s_waitcnt lgkmcnt(0)")
    A("s_load_dword s18, s[16:17], 0")
    for j in range(NB):
        load(DB + 8 * j, "s32" if j == 0 else "s33")
        if j:
            A("s_add_u32 s33, s33, s21")
        A(f"buffer_load_dword v2, v1, s[4:7], s6 offen")
    A("s_waitcnt lgkmcnt(0)")
    A("s_and_b32 s19, s18, s20")
    A("s_lshl_b32 s18, s18, 16")
    if a.align:
        A(f".p2align {a.align}")
    A("L_loop:")
    for j in range(NB):
        X = DB + 8 * j
        V = X + 4
        A(f"s_cmp_ge_u32 s32, {HALF}")
        A("s_cselect_b32 s22, s19, s18")
        A(f"s_waitcnt vmcnt({3*(NB-1)+1})")
        for d in range(4):
            A(f"v_lshlrev_b32 v{T+2*d}, 16, v{V+d}")
            A(f"v_and_b32 v{T+2*d+1}, s20, v{V+d}")
        for d in range(4):
            A(f"v_lshlrev_b32 v{T+8+2*d}, 16, v{X+d}")
            A(f"v_and_b32 v{T+8+2*d+1}, s20, v{X+d}")
        load(X, "s33")
        A("s_add_u32 s33, s33, s21")
        for d in range(4):
            t = T + 2 * d
            A(f"v_pk_mul_f32 v[{t}:{t+1}], v[{t}:{t+1}], s[22:23] op_sel_hi:[1,0]")
        for d in range(4):
            t = T + 2 * d
            A(f"v_cvt_pk_bf16_f32 v{P+d}, v{t}, v{t+1}")
        for d in range(4):
            t = T + 2 * d
            A(f"v_lshlrev_b32 v{t}, 16, v{P+d}")
            A(f"v_and_b32 v{t+1}, s20, v{P+d}")
        for d in range(4):
            t = T + 2 * d
            x = T + 8 + 2 * d
            A(f"v_pk_add_f32 v[{x}:{x+1}], v[{x}:{x+1}], v[{t}:{t+1}] neg_lo:[0,1] neg_hi:[0,1]")
        for d in range(4):
            x = T + 8 + 2 * d
            A(f"v_cvt_pk_bf16_f32 v{R+d}, v{x}, v{x+1}")
        A(f"buffer_store_dwordx4 v[{R}:{R+3}], v1, s[12:15], s32 offen{sf}")
        A("s_add_u32 s32, s32, s21")
        if j == NB - 1:
            A("s_cmp_lt_u32 s32, s6")
            A("s_cbranch_scc1 L_loop")
        elif U % NB and (j + 1) == U % NB:
            A("s_cmp_ge_u32 s32, s6")
            A("s_cbranch_scc1 L_end")
    A("L_end:")
    A("s_endpgm")
    nv = P + 4
    acc = (nv + 3) // 4 * 4
    A('.section .rodata,"a"')
    A(".p2align 6")
    A(f".amdhsa_kernel {name}_kernel")
    A(f"  .amdhsa_next_free_vgpr {nv}")
    A(f"  .amdhsa_next_free_sgpr 40")
    A(f"  .amdhsa_accum_offset {acc}")
    A("  .amdhsa_group_segment_fixed_size 0")
    A("  .amdhsa_kernarg_size 48")
    A("  .amdhsa_user_sgpr_count 2")
    A("  .amdhsa_user_sgpr_kernarg_segment_ptr 1")
    A("  .amdhsa_system_sgpr_workgroup_id_x 1")
    A("  .amdhsa_float_denorm_mode_32 3")
    A("  .amdhsa_float_denorm_mode_16_64 3")
    A(".end_amdhsa_kernel")
    body = []
    for l in L:
        if l.startswith((";", ".", " ")) or l.endswith(":"):
            body.append(l)
        else:
            body.append("    " + l)
    return HEADER + "\n".join(body) + "\n"

if __name__ == "__main__":
    ap = argparse.ArgumentParser()
    ap.add_argument("--block", type=int, default=512)
    ap.add_argument("--U", type=int, default=10)
    ap.add_argument("--NB", type=int, default=2)
    ap.add_argument("--align", type=int, default=0)
    ap.add_argument("--lflags", default="")
    ap.add_argument("--sflags", default="")
    ap.add_argument("-o", default="-")
    a = ap.parse_args()
    s = gen(a)
    if a.o == "-":
        sys.stdout.write(s)
    else:
        open(a.o, "w").write(s)
```
